```python
import torch

def _softmax(x, axis=-1):
    return torch.softmax(x, dim=axis)
def _gelu(x):
    return torch.nn.functional.gelu(x, approximate="tanh")
def _silu(x):
    return torch.nn.functional.silu(x)
def _sigmoid(x):
    return torch.sigmoid(x)
def _layernorm(x, axis=-1, eps=1e-5):
    m = x.mean(dim=axis, keepdim=True)
    v = x.var(dim=axis, keepdim=True, unbiased=False)
    return (x - m) / torch.sqrt(v + eps)
def _scatter_add(tgt, idx, src, axis=0):
    return tgt.clone().index_add_(axis, idx, src)
def _segment_sum(src, seg, n):
    out = torch.zeros((n,) + src.shape[1:], dtype=src.dtype)
    return out.index_add_(0, seg, src)
def _pad(x, pw):
    flat = tuple(v for pair in reversed(pw) for v in pair)
    return torch.nn.functional.pad(x, flat)

kernel_name = 'parallel_sum__spectral_gfnet__mixer_channel_mlp__prompt'

def setup_inputs():

    _w = (lambda a: (lambda t: t.to(torch.bfloat16) if t.is_floating_point() else t)(torch.as_tensor(a)))
    def _A_setup():
        B, S, D = 1, 2048, 512
        Df = D // 2 + 1
        return {
            "x": _w((lambda *s: torch.randn(*s, dtype=torch.bfloat16) * 0.05)(B, S, D)),
            "w_r": _w((lambda *s: torch.randn(*s, dtype=torch.bfloat16) * 0.8)(S, Df) * 0.02),
            "w_i": _w((lambda *s: torch.randn(*s, dtype=torch.bfloat16) * 0.8)(S, Df) * 0.02),
        }
    _A_in = _A_setup()

    def _B_setup():
        B, S, D, F = 1, 2048, 512, 1792
        return {
            "x": _w((lambda *s: torch.randn(*s, dtype=torch.bfloat16) * 0.05)(B, S, D)),
            "w1": _w((lambda *s: torch.randn(*s, dtype=torch.bfloat16) * 0.8)(D, F) * (D ** -0.5)),
            "b1": _w((lambda *s: torch.randn(*s, dtype=torch.bfloat16) * 0.4)(F)),
            "w2": _w((lambda *s: torch.randn(*s, dtype=torch.bfloat16) * 0.05)(F, D) * (F ** -0.5)),
            "b2": _w((lambda *s: torch.randn(*s, dtype=torch.bfloat16) * 0.05)(D)),
        }
    _B_in = _B_setup()

    return {
        "A_x": _A_in["x"],
        "A_w_r": _A_in["w_r"],
        "A_w_i": _A_in["w_i"],
        "B_x": _B_in["x"],
        "B_w1": _B_in["w1"],
        "B_b1": _B_in["b1"],
        "B_w2": _B_in["w2"],
        "B_b2": _B_in["b2"],
    }

def reference(A_x, A_w_r, A_w_i, B_x, B_w1, B_b1, B_w2, B_b2):
    def _A_ref(x, w_r, w_i):
        B, S, D = x.shape
        X = (lambda x, axes=(-2,-1): torch.fft.rfft2(x.float(), dim=axes))(x, axes=(-2, -1))
        W = w_r + 1j * w_i
        X = X * W
        y = (lambda x, s, axes=(-2,-1): torch.fft.irfft2(x, s=s, dim=axes).to(torch.bfloat16))(X, (S, D), axes=(-2, -1))
        return y

    def _B_ref(x, w1, b1, w2, b2):
        y = _layernorm(x, axis=-1)
        h = _gelu(torch.einsum("bsd,df->bsf", y, w1) + b1)
        return torch.einsum("bsf,fd->bsd", h, w2) + b2

    x = A_x
    xn = _layernorm(x, axis=-1)
    return x + _A_ref(xn, A_w_r, A_w_i) + _B_ref(xn, B_w1, B_b1, B_w2, B_b2)
```

```python
class Asm:
    def __init__(self):
        self.lines = []
        self.nlabel = 0
    def __call__(self, s):
        for l in s.split('\n'):
            l = l.strip()
            if l:
                self.lines.append(('' if l.endswith(':') else '    ') + l)
    def c(self, s):
        self.lines.append('    ; ' + s)
    def label(self, base='L'):
        self.nlabel += 1
        return f'{base}_{self.nlabel}'
    def text(self):
        return '\n'.join(self.lines) + '\n'

def vr(b, n=1):
    return f'v{b}' if n == 1 else f'v[{b}:{b+n-1}]'
def sr(b, n=1):
    return f's{b}' if n == 1 else f's[{b}:{b+n-1}]'

def kernel_wrap(name, body, vgpr=256, sgpr=102, accum=None):
    if accum is None:
        accum = min(256, (vgpr + 3) // 4 * 4)
    return f'''.text
.globl {name}
.p2align 8
.type {name},@function
{name}:
{body}
.section .rodata,"a"
.p2align 6
.amdhsa_kernel {name}
  .amdhsa_next_free_vgpr {vgpr}
  .amdhsa_next_free_sgpr {sgpr}
  .amdhsa_accum_offset {accum}
  .amdhsa_group_segment_fixed_size 0
  .amdhsa_kernarg_size 88
  .amdhsa_user_sgpr_count 2
  .amdhsa_user_sgpr_kernarg_segment_ptr 1
  .amdhsa_system_sgpr_workgroup_id_x 1
.end_amdhsa_kernel
'''
```

```python
import re
TRANS = ('v_exp_f32','v_log_f32','v_rcp_f32','v_rsq_f32','v_sqrt_f32','v_sin_f32','v_cos_f32','v_rcp_iflag_f32')
def regs_of(tok):
    tok = tok.strip().lstrip('-')
    m = re.fullmatch(r'abs\((.*)\)', tok)
    if m: tok = m.group(1)
    tok = tok.strip('|')
    m = re.fullmatch(r'([vsa])(\d+)', tok)
    if m: return {(m.group(1), int(m.group(2)))}
    m = re.fullmatch(r'([vsa])\[(\d+):(\d+)\]', tok)
    if m: return {(m.group(1), i) for i in range(int(m.group(2)), int(m.group(3)) + 1)}
    if tok == 'vcc': return {('s', 'vcc')}
    if tok == 'exec': return {('s', 'exec')}
    if tok == 'm0': return {('s', 'm0')}
    return set()
class I:
    pass
def parse(line):
    s = line.split(';')[0].strip()
    if not s or s.endswith(':') or s.startswith('.'):
        return None
    parts = s.split(None, 1)
    mn = parts[0]
    rest = parts[1] if len(parts) > 1 else ''
    ops, depth, cur = [], 0, ''
    for ch in rest:
        if ch in '[(': depth += 1
        if ch in '])': depth -= 1
        if ch == ',' and depth == 0:
            ops.append(cur); cur = ''
        else: cur += ch
    if cur.strip(): ops.append(cur)
    mods = ''
    if ops:
        last = ops[-1].strip().split(None, 1)
        ops[-1] = last[0]
        mods = last[1] if len(last) > 1 else ''
    ops = [o.strip() for o in ops]
    i = I(); i.mn = mn; i.ops = ops; i.mods = mods
    base = re.sub(r'_(e32|e64|dpp|sdwa)$', '', mn)
    i.base = base
    i.mfma = mn.startswith('v_mfma')
    i.valu = mn.startswith('v_') and not i.mfma
    i.trans = base in TRANS
    i.dot = mn.startswith('v_dot')
    i.dpp = mn.endswith('_dpp') or 'quad_perm' in mods or 'row_' in mods
    i.sdwa = mn.endswith('_sdwa')
    i.perml = mn.startswith('v_permlane')
    i.vmem = mn.startswith(('buffer_', 'global_', 'flat_'))
    i.ds = mn.startswith('ds_')
    i.salu = mn.startswith('s_')
    i.lds_dma = i.vmem and (' lds' in (' ' + mods) or 'load_lds' in mn)
    R = [regs_of(o) for o in ops]
    w, r = set(), set()
    i.srcc = set(); i.srcab = set(); i.sdata = set()
    if i.mfma:
        w = R[0]; i.srcab = R[1] | R[2]; i.srcc = R[3]; r = i.srcab | i.srcc
        i.passes = 8 if '32x32' in mn else 4
    elif i.valu:
        if base in ('v_swap_b32',) or i.perml:
            w = R[0] | R[1]; r = R[0] | R[1]
        elif base.startswith('v_cmp'):
            w = R[0]; r = set().union(*R[1:])
            if base.startswith('v_cmpx'): w |= {('s', 'exec')}
        elif base in ('v_add_co_u32','v_sub_co_u32','v_addc_co_u32','v_subb_co_u32','v_mad_u64_u32'):
            w = R[0] | R[1]; r = set().union(*R[2:])
        elif base == 'v_nop':
            pass
        else:
            w = R[0]; r = set().union(*R[1:]) if len(R) > 1 else set()
            if base in ('v_fmac_f32','v_dot2c_f32_bf16','v_writelane_b32') or i.dpp or i.sdwa: r |= R[0]
    elif i.vmem:
        if 'store' in mn or 'atomic' in mn:
            if mn.startswith('buffer'): i.sdata = R[0]
            else: i.sdata = R[1]
            r = set().union(*R)
            if 'atomic' in mn and 'sc0' in mods: w = R[0]
        elif mn in ('buffer_inv', 'buffer_wbl2'):
            pass
        elif i.lds_dma:
            r = set().union(*R) | {('s', 'm0')}
        else:
            w = R[0]; r = set().union(*R[1:])
    elif i.ds:
        if mn.startswith(('ds_read', 'ds_bpermute', 'ds_permute', 'ds_swizzle')) or '_rtn' in mn:
            w = R[0]; r = set().union(*R[1:]) if len(R) > 1 else set()
        else:
            r = set().union(*R) if R else set()
        if 'addtid' in mn: r |= {('s', 'm0')}
    elif i.salu:
        if mn.startswith(('s_cmp', 's_cbranch', 's_branch', 's_waitcnt', 's_nop', 's_barrier', 's_endpgm', 's_sleep', 's_setprio', 's_bitcmp')):
            r = set().union(*R) if R else set()
        else:
            w = R[0] if R else set(); r = set().union(*R[1:]) if len(R) > 1 else set()
            if 'saveexec' in mn: w = w | {('s', 'exec')}
    i.w, i.r = w, r
    i.states = 1
    if mn == 's_nop': i.states = int(ops[0], 0) + 1
    return i
def isv(x): return {q for q in x if q[0] in 'va'}
def iss(x): return {q for q in x if q[0] == 's'}
def need(p, c):
    n = 0
    pw_v, pw_s = isv(p.w), iss(p.w)
    if p.valu:
        if c.mfma and (pw_v & c.r): n = max(n, 3 if p.dot else 2)
        if c.valu and c.dpp and (pw_v & c.r): n = max(n, 2)
        if c.perml and (pw_v & c.r): n = max(n, 2)
        if c.base in ('v_readfirstlane_b32', 'v_readlane_b32') and (pw_v & c.r): n = max(n, 1)
        if p.trans and c.valu and not c.trans and (pw_v & c.r): n = max(n, 1)
        if p.trans and (c.vmem or c.ds) and (pw_v & c.r): n = max(n, 1)
        if p.sdwa and c.valu and (pw_v & (c.r | c.w)): n = max(n, 1)
        if p.dot:
            if c.dot and c.base == p.base:
                ab = set().union(*[regs_of(o) for o in c.ops[1:3]])
                if pw_v & ab: n = max(n, 3)
            elif pw_v & (c.r | c.w): n = max(n, 3)
        if pw_s:
            if c.vmem and (pw_s & c.r): n = max(n, 5)
            if c.valu and (pw_s & c.r): n = max(n, 4 if c.base in ('v_readlane_b32','v_writelane_b32') else 2)
            if c.valu and c.base == 'v_cndmask_b32' and ('s','vcc') in pw_s: n = max(n, 2)
            if c.salu and (pw_s & c.r): n = max(n, 1)
            if c.salu and c.mn.startswith('s_cbranch_vcc') and ('s','vcc') in pw_s: n = max(n, 1)
            if ('s', 'exec') in pw_s:
                if c.dpp: n = max(n, 5)
                if c.mfma or c.perml or c.base in ('v_readfirstlane_b32','v_readlane_b32','v_writelane_b32'): n = max(n, 4)
    if p.mfma:
        big = {4: 8, 8: 12}[p.passes]
        if c.mfma:
            if p.w & c.srcab: n = max(n, big)
            if p.w & c.srcc:
                if not (p.w == c.srcc and p.passes == c.passes): n = max(n, {4: 6, 8: 10}[p.passes])
            elif p.w & c.w: n = max(n, big)
        elif (c.valu or c.vmem or c.ds) and (p.w & (c.r | c.w)): n = max(n, big)
        if (c.valu or c.ds or c.vmem) and (p.srcc & c.w): n = max(n, {4: 3, 8: 7}[p.passes])
    if p.salu and ('s', 'm0') in p.w and (c.lds_dma or (c.ds and 'addtid' in c.mn)): n = max(n, 1)
    if p.vmem and len(p.sdata) >= 3 and (p.sdata & c.w): n = max(n, 2)
    return n
def fix(lines, verbose=False):
    out, hist = [], []
    added = 0
    for ln in lines:
        c = parse(ln)
        if c is None:
            out.append(ln); continue
        dist, req = 0, 0
        for p in reversed(hist[-24:]):
            k = need(p, c)
            if k - dist > req: req = k - dist
            dist += p.states
            if dist >= 20: break
        while req > 0:
            k = min(req, 16)
            out.append(f'    s_nop {k-1}')
            hist.append(parse(f's_nop {k-1}')); req -= k; added += 1
        out.append(ln); hist.append(c)
    return out, added
```

```python
import sys, struct, math
from asmlib import *
import hazard

def f2u(f):
    return struct.unpack('<I', struct.pack('<f', f))[0]
def fh(f):
    return '0x%08x' % f2u(f)

WS_Y1 = 0
WS_Y2 = 2 << 20
WS_WT = 4 << 20
WS_H = 6 << 20
WS_FLAG = 14 << 20
WS_TIME = 15 << 20
WS_SIZE = 16 << 20
L_X = 0
L_W = 65536
L_FE = 131072
L_WS = 147456
L_STAT = 155648
L_CS = 157696
LDS_BYTES = 163840

P_X, P_WR, P_WI, P_W1, P_B1, P_W2, P_B2, P_OUT, P_DBG, P_WS = 4, 6, 8, 12, 14, 16, 18, 20, 22, 24
R_X, R_W1, R_WS, R_WR, R_WI, R_B1, R_W2, R_B2, R_OUT = 28, 32, 36, 40, 44, 48, 52, 56, 60
S_WAVE, S_XCD, S_LOC, S_I, S_HX, S_Q, S_RH, S_CP = 64, 65, 66, 67, 68, 69, 70, 71
S_T0, S_T1, S_T2, S_T3 = 72, 73, 74, 75
S_XOFF, S_WOFF, S_XM0, S_WM0, S_JE, S_JG = 76, 77, 78, 79, 80, 81
S_ONES, S_C1, S_C2 = 82, 83, 84
S_TS = 86

class VM:
    def __init__(self): self.q = []
    def issue(self, tag): self.q.append(tag)
    def wait(self, a, tag):
        idx = max(i for i, t in enumerate(self.q) if t == tag)
        n = len(self.q) - 1 - idx
        a(f's_waitcnt vmcnt({n})')
        self.q = self.q[idx + 1:]
    def wait_all(self, a):
        a('s_waitcnt vmcnt(0)'); self.q = []
    def copy(self):
        v = VM(); v.q = list(self.q); return v

def srd(a, r, p, size):
    a(f's_mov_b32 s{r}, s{p}'); a(f's_mov_b32 s{r+1}, s{p+1}')
    a(f's_mov_b32 s{r+2}, {size}'); a(f's_mov_b32 s{r+3}, 0x20000')

TIMING = False
EXP = set()
STATM = 0
STAMPS = []
def stamp(a, name):
    if TIMING and name in STAMPS:
        k = STAMPS.index(name)
        a(f's_memtime s[{S_TS+2*k}:{S_TS+2*k+1}]')
def dump_stamps(a, n, slot):
    if not TIMING: return
    a('s_waitcnt lgkmcnt(0)')
    a(f's_lshl_b32 s{S_T0}, s2, 3'); a(f's_add_u32 s{S_T0}, s{S_T0}, s{S_WAVE}'); a(f's_lshl_b32 s{S_T0}, s{S_T0}, 5')
    a(f's_add_u32 s{S_T0}, s{S_T0}, {WS_TIME + slot*65536}')
    for k in range(8):
        a(f'v_mov_b32 v{8+k}, s{S_TS+2*min(k,n-1)}')
    a('v_mov_b32 v7, 0')
    a(f'buffer_store_dwordx4 v[8:11], v7, s[{R_WS}:{R_WS+3}], s{S_T0} offen')
    a(f'buffer_store_dwordx4 v[12:15], v7, s[{R_WS}:{R_WS+3}], s{S_T0} offen offset:16')

def prologue(a, endlabel):
    a('s_cmp_ge_u32 s2, 256')
    a(f's_cbranch_scc1 {endlabel}')
    a('s_load_dwordx16 s[4:19], s[0:1], 0')
    a('s_load_dwordx4 s[20:23], s[0:1], 64')
    a('s_load_dwordx2 s[24:25], s[0:1], 80')
    stamp(a, 'start')
    a('v_lshrrev_b32 v3, 6, v0')
    a('v_and_b32 v0, 63, v0')
    a(f'v_readfirstlane_b32 s{S_WAVE}, v3')
    a('v_and_b32 v1, 15, v0')
    a('v_lshrrev_b32 v2, 4, v0')
def all_srds(a, skip=()):
    for r, p, sz in ((R_X, P_X, 2097152), (R_W1, P_W1, 1835008), (R_WS, P_WS, WS_SIZE), (R_WR, P_WR, 1052672), (R_B1, P_B1, 3584),
                     (R_W2, P_W2, 1835008), (R_B2, P_B2, 1024), (R_OUT, P_OUT, 2097152)):
        if r not in skip: srd(a, r, p, sz)

ST = ''
LD = ''

V_XO = 4
V_WO = 6
V_XA = 8
V_WA = 16
V_FA = 20
V_S1, V_S2 = 22, 23
V_B1 = 24
V_ACC = 28
V_ACE = 60
V_XF = 64
V_WF = 96
V_FF = 112
V_T = 120
V_KF = 136
V_ONE = 144
V_ACS = 148
V_AS1 = 156
V_AS2 = 160

def p1_setup(a, vm):
    T = V_T
    a(f's_bfe_u32 s{S_I}, s2, 0x20001'); a(f's_bfe_u32 s{S_T0}, s2, 0x20003'); a(f's_lshl2_add_u32 s{S_I}, s{S_I}, s{S_T0}')
    a(f's_and_b32 s{S_HX}, s2, 1'); a(f's_lshr_b32 s{S_Q}, s2, 5')
    a(f's_mul_i32 s{S_JG}, s{S_HX}, 7'); a(f's_add_u32 s{S_JG}, s{S_JG}, s{S_Q}')
    a(f's_lshl_b32 s{S_XOFF}, s{S_I}, 17')
    a(f's_lshl_b32 s{S_WOFF}, s{S_JG}, 8')
    a(f's_lshl_b32 s{S_XM0}, s{S_WAVE}, 12')
    a(f'v_lshrrev_b32 v{T}, 3, v0')
    a(f'v_and_b32 v{T+1}, 7, v0')
    a(f'v_lshrrev_b32 v{T+2}, 1, v{T}')
    a(f'v_xor_b32 v{T+2}, v{T+2}, v{T+1}')
    a(f'v_lshl_add_u32 v{T+3}, v3, 4, v{T}')
    a(f'v_lshlrev_b32 v{T+3}, 10, v{T+3}')
    a(f'v_lshl_add_u32 v{V_XO}, v{T+2}, 4, v{T+3}')
    a(f'v_xor_b32 v{V_XO+1}, 64, v{V_XO}')
    a(f'v_add_u32 v{V_XO+1}, {8192-1024}, v{V_XO+1}')
    a(f'v_and_b32 v{T+4}, 1, v3')
    a(f'v_lshl_or_b32 v{T+4}, v{T+4}, 2, v2')
    a(f'v_lshlrev_b32 v{T+4}, 1, v{T+4}')
    a(f'v_xor_b32 v{T+4}, v{T+4}, v1')
    a(f'v_lshl_add_u32 v{T+5}, v3, 3, v2')
    a(f'v_mul_u32_u24 v{T+6}, 3584, v{T+5}')
    a(f'v_lshl_add_u32 v{T+6}, v{T+4}, 4, v{T+6}')
    a(f'v_add_u32 v{V_WO}, 2048, v{T+6}')
    a(f'v_add_u32 v{V_WO+1}, {4*3584 + 1024}, v{T+6}')
    a(f's_mov_b32 s{R_X+2}, 2097152'); a(f's_mov_b32 s{R_X+3}, 0x20000')
    a(f's_mov_b32 s{R_W1+2}, {1835008+4096}'); a(f's_mov_b32 s{R_W1+3}, 0x20000')
    a('s_waitcnt lgkmcnt(0)')
    stamp(a, 'karg')
    a(f's_mov_b64 s[{R_X}:{R_X+1}], s[{P_X}:{P_X+1}]')
    a(f's_sub_u32 s{R_W1}, s{P_W1}, 4096'); a(f's_subb_u32 s{R_W1+1}, s{P_W1+1}, 0')

def p1_dma(a, vm, chunk, typeF):
    out = []
    slot = chunk & 3
    out.append(f's_add_u32 m0, s{S_XM0}, {slot*32768}')
    if chunk > 0:
        out.append(f's_add_u32 s{S_XOFF}, s{S_XOFF}, 128')
    for e in range(2):
        out.append(f'buffer_load_dwordx4 v{V_XO+e}, s[{R_X}:{R_X+3}], s{S_XOFF} offen offset:{1024*e} lds')
        vm.issue(f'c{chunk}')
    if not typeF:
        if chunk > 0:
            out.append(f's_add_u32 s{S_WOFF}, s{S_WOFF}, {64*3584}')
        for e in range(2):
            out.append(f'buffer_load_dwordx4 v{V_WO+e}, s[{R_W1}:{R_W1+3}], s{S_WOFF} offen offset:{2048 + 1024*e} lds')
            vm.issue(f'c{chunk}')
    return out

def p1_wdma(a, vm):
    T = V_T
    a(f's_lshr_b32 s{S_RH}, s{S_WAVE}, 2'); a(f's_and_b32 s{S_CP}, s{S_WAVE}, 3')
    a(f's_cmp_eq_u32 s{S_RH}, 0')
    a(f's_cselect_b64 s[{R_WR}:{R_WR+1}], s[{P_WR}:{P_WR+1}], s[{P_WI}:{P_WI+1}]')
    a(f's_mov_b32 s{R_WR+2}, 1052672'); a(f's_mov_b32 s{R_WR+3}, 0x20000')
    a(f'v_xor_b32 v{T+2}, v{T}, v{T+1}')
    a(f's_lshl2_add_u32 s{S_T0}, s{S_Q}, s{S_CP}')
    a(f's_bfe_u32 s{S_T1}, s2, 0x30002')
    a(f's_lshl3_add_u32 s{S_T0}, s{S_T0}, s{S_T1}')
    a(f'v_lshl_add_u32 v{T+3}, s{S_T0}, 3, v{T}')
    a(f'v_mul_u32_u24 v{T+3}, 514, v{T+3}')
    a(f'v_lshl_add_u32 v{T+3}, v{T+2}, 4, v{T+3}')
    a(f's_and_b32 s{S_T1}, s2, 3'); a(f's_lshl_b32 s{S_T1}, s{S_T1}, 7')
    a(f's_lshl_b32 s{S_T0}, s{S_WAVE}, 10'); a(f's_add_u32 m0, s{S_T0}, {L_WS}')
    a(f'v_add_u32 v{T+3}, 2, v{T+3}')
    a(f'buffer_load_dwordx4 v{T+3}, s[{R_WR}:{R_WR+3}], s{S_T1} offen lds')
    vm.issue('wdma')

def p1_genF_init(a):
    T = V_T
    a(f's_lshl_b32 s{S_T0}, s{S_HX}, 6'); a(f's_add_u32 s{S_T0}, s{S_T0}, 129')
    a(f'v_lshl_add_u32 v{T+4}, v{T+4}, 2, s{S_T0}')
    a(f'v_cvt_f32_u32 v{T+4}, v{T+4}')
    a(f'v_mul_f32 v{V_KF}, {fh(1/512)}, v{T+4}')
    for q in range(1, 4):
        a(f'v_add_f32 v{V_KF+q}, {fh(q/512)}, v{V_KF}')
    a(f'v_cvt_f32_u32 v{V_KF+4}, v{T+5}')
    a(f'v_lshl_add_u32 v{V_KF+5}, v0, 4, s{S_XM0}')
    a(f'v_add_u32 v{V_KF+6}, 0x10000, v{V_KF+5}')
def p1_genF(chunk):
    T = V_T
    slot = chunk & 3
    o = []
    for e in range(2):
        o.append(f'v_add_f32 v{T+12}, {fh(float(chunk*64 + e*4))}, v{V_KF+4}')
        for q in range(4):
            o.append(f'v_mul_f32 v{T+q}, v{T+12}, v{V_KF+q}')
        for q in range(4):
            o.append(f'v_cos_f32 v{T+4+q}, v{T+q}')
            o.append(f'v_sin_f32 v{T+q}, v{T+q}')
        for q in range(4):
            o.append(f'v_cvt_pk_bf16_f32 v{T+8+q}, v{T+4+q}, -v{T+q}')
        o.append(f'ds_write_b128 v{V_KF+5+(slot>>1)}, v[{T+8}:{T+11}] offset:{(slot&1)*32768 + 2048 + e*1024}')
    return o

def p1_addr_setup(a):
    T = V_T + 8
    a(f'v_lshrrev_b32 v{T}, 1, v1')
    a(f'v_and_b32 v{T+1}, 4, v3')
    a(f'v_or_b32 v{T+2}, v{T+1}, v2')
    a(f'v_xor_b32 v{T}, v{T}, v{T+2}')
    a(f'v_lshlrev_b32 v{T}, 4, v{T}')
    a(f'v_lshl_add_u32 v{T}, v1, 7, v{T}')
    a(f'v_lshl_add_u32 v{T}, v{T+1}, 10, v{T}')
    a(f'v_and_b32 v{T+3}, 3, v3')
    a(f'v_lshl_add_u32 v{V_XA}, v{T+3}, 13, v{T}')
    for t in range(1, 4):
        a(f'v_xor_b32 v{V_XA+t}, {t<<13}, v{V_XA}')
    for t in range(4):
        a(f'v_xor_b32 v{V_XA+4+t}, 64, v{V_XA+t}')
    a(f'v_lshrrev_b32 v{T}, 2, v1')
    a(f'v_and_b32 v{T+4}, 1, v2')
    a(f'v_lshl_or_b32 v{T+4}, v{T+4}, 2, v{T}')
    a(f'v_lshlrev_b32 v{T+3}, 1, v{T+3}')
    a(f'v_xor_b32 v{T+4}, v{T+3}, v{T+4}')
    a(f'v_lshlrev_b32 v{T}, 8, v{T}')
    a(f'v_lshl_add_u32 v{T}, v{T+2}, 12, v{T}')
    a(f'v_lshl_add_u32 v{T}, v{T+4}, 5, v{T}')
    a(f'v_and_b32 v{T+4}, 3, v1')
    a(f'v_lshl_add_u32 v{T}, v{T+4}, 3, v{T}')
    a(f'v_add_u32 v{V_WA}, 2048, v{T}')
    a(f'v_xor_b32 v{V_WA+1}, 32, v{V_WA}')
    a(f'v_xor_b32 v{V_WA+2}, 0x4000, v{V_WA}')
    a(f'v_xor_b32 v{V_WA+3}, 0x4000, v{V_WA+1}')
    a(f'v_lshlrev_b32 v{T+1}, 8, v{T+1}')
    a(f'v_lshl_add_u32 v{T+1}, v0, 4, v{T+1}')
    a(f'v_add_u32 v{V_FA}, {L_FE}, v{T+1}')
    a(f'v_xor_b32 v{V_FA+1}, 0x400, v{V_FA}')
    for k in range(4): a(f'v_mov_b32 v{V_ONE+k}, 0x3f803f80')
    a(f'v_mov_b32 v{V_S1}, 0'); a(f'v_mov_b32 v{V_S2}, 0')

def p1_b1(a, vm):
    T = V_T + 8
    srd(a, R_B1, P_B1, 3584)
    a(f's_lshl_b32 s{S_T0}, s{S_JG}, 8')
    a(f'v_and_b32 v{T}, 3, v3')
    a(f'v_lshlrev_b32 v{T}, 6, v{T}')
    a(f'v_lshl_add_u32 v{T}, v2, 3, v{T}')
    a(f'buffer_load_dwordx2 v[{V_B1}:{V_B1+1}], v{T}, s[{R_B1}:{R_B1+3}], s{S_T0} offen'); vm.issue('b1')
    a(f'buffer_load_dwordx2 v[{V_B1+2}:{V_B1+3}], v{T}, s[{R_B1}:{R_B1+3}], s{S_T0} offen offset:32'); vm.issue('b1')

def p1_gen_extra(a, h):
    X = V_XF
    if h == 0:
        a(f's_lshl3_add_u32 s{S_JE}, s{S_HX}, s{S_Q}')
        a(f'v_lshrrev_b32 v{X}, 1, v1')
        a(f'v_lshl_add_u32 v{X}, s{S_JE}, 3, v{X}')
        a(f'v_add_u32 v{X}, 1, v{X}')
        a(f'v_cvt_f32_u32 v{X}, v{X}')
        a(f'v_mul_f32 v{X}, {fh(1/512)}, v{X}')
        a(f'v_and_b32 v{X+1}, 1, v1')
        a(f'v_cvt_f32_u32 v{X+1}, v{X+1}')
        a(f'v_mul_f32 v{X+1}, {fh(0.25)}, v{X+1}')
        a(f'v_lshl_add_u32 v{X+2}, v3, 3, v2')
        a(f'v_lshlrev_b32 v{X+2}, 3, v{X+2}')
        a(f'v_cvt_f32_u32 v{X+2}, v{X+2}')
        a(f'v_fma_f32 v{X+2}, v{X+2}, v{X}, v{X+1}')
        a(f'v_lshlrev_b32 v{X+3}, 11, v3')
        a(f'v_lshl_add_u32 v{X+3}, v0, 4, v{X+3}')
        a(f'v_add_u32 v{X+3}, {L_FE}, v{X+3}')
    for i in range(8):
        a(f'v_fmamk_f32 v{X+8+i}, v{X}, {fh(float(32*h+i))}, v{X+2}')
    for i in range(8):
        a(f'v_cos_f32 v{X+8+i}, v{X+8+i}')
    for i in range(4):
        a(f'v_cvt_pk_bf16_f32 v{X+4+i+16*h}, v{X+8+2*i}, v{X+9+2*i}')
    a(f'ds_write_b128 v{X+3}, v[{X+4+16*h}:{X+7+16*h}] offset:{h*1024}')

def p1_reads(chunk, o):
    so = (chunk & 1) * 32768
    out = []
    if 'noread' in EXP: return out
    def xr(t):
        d = V_XF + o*16 + t*4
        out.append(f'ds_read_b128 v[{d}:{d+3}], v{V_XA+o*4+t} offset:{so}')
    def wr(u):
        for hh in range(2):
            d = V_WF + o*8 + u*4 + hh*2
            out.append(f'ds_read_b64_tr_b16 v[{d}:{d+1}], v{V_WA+o*2+u} offset:{so + hh*1024}')
    wr(0); xr(0); wr(1); xr(1); xr(2); xr(3)
    d = V_FF + o*4
    out.append(f'ds_read_b128 v[{d}:{d+3}], v{V_FA+o} offset:{chunk*2048}')
    return out

def p1_mfmas(chunk, o, typeF):
    first = (chunk == 0 and o == 0)
    seq = []
    def mf(d, A, B, f=first):
        seq.append(f'v_mfma_f32_16x16x32_bf16 {vr(d,4)}, {vr(A,4)}, {vr(B,4)}, {"0" if f else vr(d,4)}')
    x0 = V_XF + o*16
    for t in range(4):
        for u in range(2):
            mf(V_ACC + (t*2+u)*4, V_WF+o*8+u*4, x0+t*4)
    mf(V_ACE, V_FF+o*4, x0)
    if o == 0 and not typeF and 'nocs' not in EXP:
        for u in range(2): mf(V_ACS+u*4, V_WF+u*4, V_ONE, chunk == 0)
    if STATM >= 1: mf(V_AS1, V_ONE, x0)
    if STATM >= 2: mf(V_AS2, x0, x0)
    if 'nomfma' in EXP: seq = seq[:1] + ['s_nop 0']*8
    fill = []
    T = V_T + 13
    if 'nostat' not in EXP and STATM < 2:
        for k in range(4):
            fill.append(f'v_lshlrev_b32 v{T}, 16, v{x0+k}')
            fill.append(f'v_and_b32 v{T+1}, 0xffff0000, v{x0+k}')
            fill.append(f'v_fmac_f32 v{V_S2}, v{T}, v{T}')
            if STATM < 1: fill.append(f'v_add_f32 v{V_S1}, v{V_S1}, v{T}')
            fill.append(f'v_fmac_f32 v{V_S2}, v{T+1}, v{T+1}')
            if STATM < 1: fill.append(f'v_add_f32 v{V_S1}, v{V_S1}, v{T+1}')
    return seq, fill

def interleave(a, mf, early, late):
    early, late = list(early), list(late)
    n = len(mf)
    per = -(-len(late) // n) if n else 0
    for m in mf:
        a(m)
        for _ in range(2):
            if early: a(early.pop(0))
        for _ in range(per):
            if late: a(late.pop(0))
    for x in early + late: a(x)

def p1_wt(a, vm):
    T = V_T
    a(f'v_and_b32 v{T}, 7, v0')
    a(f'v_lshrrev_b32 v{T+1}, 3, v0')
    a(f'v_xor_b32 v{T+2}, v3, v{T}')
    a(f'v_lshlrev_b32 v{T+2}, 4, v{T+2}')
    a(f'v_lshl_add_u32 v{T+2}, v{T}, 7, v{T+2}')
    a(f'v_lshl_add_u32 v{T+2}, v{T+1}, 1, v{T+2}')
    a(f'v_add_u32 v{T+2}, {L_WS}, v{T+2}')
    for j in range(4):
        a(f'ds_read_u16 v{T+4+j}, v{T+2} offset:{j*1024}')
        a(f'ds_read_u16 v{T+8+j}, v{T+2} offset:{4096+j*1024}')
    a(f'v_lshl_add_u32 v{T+1}, v3, 3, v{T+1}')
    a(f'v_lshlrev_b32 v{T+1}, 13, v{T+1}')
    a(f'v_lshl_add_u32 v{T+3}, v{T}, 4, v{T+1}')
    a(f'v_mov_b32 v{T}, s2')
    for (off, wid, sh) in ((0, 2, 19), (7, 1, 12), (3, 2, 10), (5, 2, 8), (2, 1, 7)):
        a(f'v_bfe_u32 v{T+1}, v{T}, {off}, {wid}')
        a(f'v_lshl_add_u32 v{T+3}, v{T+1}, {sh}, v{T+3}')
    a(f's_mov_b32 s{S_T0}, {WS_WT}')
    a('s_waitcnt lgkmcnt(0)')
    for j in range(4): a(f'v_lshl_or_b32 v{T+4+j}, v{T+8+j}, 16, v{T+4+j}')
    a(f'buffer_store_dwordx4 v[{T+4}:{T+7}], v{T+3}, s[{R_WS}:{R_WS+3}], s{S_T0} offen{ST}'); vm.issue('wt')

def p1_loop(a, vm, typeF):
    for c in range(8):
        stamp(a, f'pre{c}')
        vm.wait(a, f'c{c}')
        a('s_waitcnt lgkmcnt(0)')
        stamp(a, f'vm{c}')
        a('s_barrier')
        stamp(a, f'bar{c}')
        nxt = c + 3
        dma, gen = [], []
        if c >= 1 and nxt < 8:
            dma = p1_dma(a, vm, nxt, typeF)
            if typeF: gen = p1_genF(nxt)
        tog = []
        if c in (2, 4, 6):
            tog = [f'v_xor_b32 v{r}, 0x10000, v{r}' for r in list(range(V_XA, V_XA+4)) + [V_WA, V_WA+1]]
        for x in tog: a(x)
        if c > 0:
            mf, fill = p1_mfmas(c - 1, 1, typeF)
            interleave(a, mf, p1_reads(c, 0) + dma, fill)
        else:
            for x in p1_reads(c, 0): a(x)
        if c in (2, 4, 6):
            for r in list(range(V_XA+4, V_XA+8)) + [V_WA+2, V_WA+3]: a(f'v_xor_b32 v{r}, 0x10000, v{r}')
        a('s_waitcnt lgkmcnt(0)')
        mf, fill = p1_mfmas(c, 0, typeF)
        interleave(a, mf, p1_reads(c, 1), fill + gen)
        if c == 5: p1_wt(a, vm)
    a('s_waitcnt lgkmcnt(0)')
    mf, fill = p1_mfmas(7, 1, typeF)
    interleave(a, mf, [], fill)

def xreduce_g(a, regs, tmp):
    for sw in ('v_permlane32_swap_b32', 'v_permlane16_swap_b32'):
        for k, r in enumerate(regs): a(f'v_mov_b32 v{tmp+k}, v{r}')
        for k, r in enumerate(regs): a(f'{sw} v{r}, v{tmp+k}')
        for k, r in enumerate(regs): a(f'v_add_f32 v{r}, v{r}, v{tmp+k}')

EPS = 1e-5
def p1_stats(a, vm, typeF):
    T = V_T
    if STATM == 0: xreduce_g(a, [V_S1, V_S2], T)
    if STATM == 1: xreduce_g(a, [V_S2], T)
    if STATM >= 1: a(f'v_mov_b32 v{V_S1}, v{V_AS1}')
    if STATM == 2:
        a(f'v_and_b32 v{T}, 3, v1')
        a(f'v_mov_b32 v{V_S2}, v{V_AS2}')
        for j in range(1, 4):
            a(f'v_cmp_eq_u32 vcc, {j}, v{T}')
            a(f'v_cndmask_b32 v{V_S2}, v{V_S2}, v{V_AS2+j}, vcc')
        a(f'v_lshrrev_b32 v{T}, 2, v1')
        a(f'v_lshl_add_u32 v{T}, v{T}, 4, v1')
        a(f'v_lshlrev_b32 v{T}, 2, v{T}')
        a(f'ds_bpermute_b32 v{V_S2}, v{T}, v{V_S2}')
        a('s_waitcnt lgkmcnt(0)')
    a(f'v_mul_f32 v{V_S1}, {fh(1/512)}, v{V_S1}')
    a(f'v_mul_f32 v{V_S2}, {fh(1/512)}, v{V_S2}')
    a(f'v_fma_f32 v{V_S2}, -v{V_S1}, v{V_S1}, v{V_S2}')
    a(f'v_max_f32 v{V_S2}, 0, v{V_S2}')
    a(f'v_add_f32 v{T+3}, {fh(EPS)}, v{V_S2}')
    a(f'v_rsq_f32 v{T+2}, v{T+3}')
    a(f'v_fmamk_f32 v{T+3}, v{T+3}, {fh(EPS)}, v{V_S2}')
    a(f'v_rsq_f32 v{T}, v{T+3}')
    a(f'v_mul_f32 v{T+1}, -v{T}, v{V_S1}')
    a(f's_lshl_b32 s{S_T0}, s{S_CP}, 9'); a(f's_lshl_b32 s{S_T1}, s{S_RH}, 8'); a(f's_add_u32 s{S_T1}, s{S_T1}, {L_STAT}')
    a(f's_add_u32 s{S_T0}, s{S_T0}, s{S_T1}')
    a(f'v_lshl_add_u32 v{T+4}, v1, 4, s{S_T0}')
    a(f'ds_write_b128 v{T+4}, v[{T}:{T+3}]')
    if not typeF:
        a(f's_lshl_b32 s{S_T0}, s{S_CP}, 7'); a(f's_lshl_b32 s{S_T2}, s{S_RH}, 9'); a(f's_add_u32 s{S_T0}, s{S_T0}, s{S_T2}')
        a(f's_add_u32 s{S_T0}, s{S_T0}, {L_CS}')
        a(f'v_lshl_add_u32 v{T+5}, v2, 4, s{S_T0}')
        a(f'ds_write_b128 v{T+5}, v[{V_ACS}:{V_ACS+3}]')
        a(f'ds_write_b128 v{T+5}, v[{V_ACS+4}:{V_ACS+7}] offset:64')
    for k in range(4): a(f'v_mul_f32 v{V_ACE+k}, v{V_ACE+k}, v{T+2}')
    a(f'v_cvt_pk_bf16_f32 v{V_ACE}, v{V_ACE}, v{V_ACE+1}')
    a(f'v_cvt_pk_bf16_f32 v{V_ACE+1}, v{V_ACE+2}, v{V_ACE+3}')
    a(f'v_lshlrev_b32 v{T+6}, 14, v2')
    a(f'v_lshl_add_u32 v{T+6}, v1, 4, v{T+6}')
    a(f's_lshl_b32 s{S_T3}, s{S_I}, 9'); a(f's_lshl_b32 s{S_T2}, s{S_RH}, 8'); a(f's_add_u32 s{S_T3}, s{S_T3}, s{S_T2}')
    a(f's_lshl_b32 s{S_T0}, s{S_JE}, 16'); a(f's_add_u32 s{S_T0}, s{S_T0}, s{S_T3}')
    a(f's_lshl_b32 s{S_T2}, s{S_CP}, 2'); a(f's_add_u32 s{S_T0}, s{S_T0}, s{S_T2}')
    if WS_Y1: a(f's_add_u32 s{S_T0}, s{S_T0}, {WS_Y1}')
    a(f's_add_u32 s{S_T2}, s{S_T0}, 8192')
    a(f'buffer_store_dword v{V_ACE}, v{T+6}, s[{R_WS}:{R_WS+3}], s{S_T0} offen{ST}'); vm.issue('y1')
    a(f'buffer_store_dword v{V_ACE+1}, v{T+6}, s[{R_WS}:{R_WS+3}], s{S_T2} offen{ST}'); vm.issue('y1')
    a('s_waitcnt lgkmcnt(0)')
    a('s_barrier')
    for t in range(4):
        a(f's_xor_b32 s{S_T0}, s{S_CP}, {t}'); a(f's_lshl_b32 s{S_T0}, s{S_T0}, 9'); a(f's_add_u32 s{S_T0}, s{S_T0}, s{S_T1}')
        a(f'v_lshl_add_u32 v{T+8+t}, v1, 4, s{S_T0}')

GC1 = -2.0 * math.sqrt(2.0 / math.pi) * math.log2(math.e)
GC2 = GC1 * 0.044715
def p1_epi_G(a, vm):
    T = V_T
    X = V_XF
    for t in range(4):
        a(f'ds_read_b64 v[{X+2*t}:{X+2*t+1}], v{T+8+t}')
    a(f's_lshl_b32 s{S_T0}, s{S_CP}, 7'); a(f's_add_u32 s{S_T0}, s{S_T0}, {L_CS}')
    a(f'v_lshl_add_u32 v{T+5}, v2, 4, s{S_T0}')
    for p in range(2):
        for u in range(2):
            d = X + 8 + p*8 + u*4
            a(f'ds_read_b128 v[{d}:{d+3}], v{T+5} offset:{p*512+u*64}')
    vm.wait(a, 'b1') if 'b1' in vm.q else None
    B = X + 24
    for u in range(2):
        for h in range(2):
            a(f'v_lshlrev_b32 v{B+u*4+h*2}, 16, v{V_B1+u*2+h}')
            a(f'v_and_b32 v{B+u*4+h*2+1}, 0xffff0000, v{V_B1+u*2+h}')
    a(f's_mov_b32 s{S_C1}, {fh(GC1)}')
    a(f'v_mov_b32 v{T+7}, {fh(GC2)}')
    a(f's_lshl_b32 s{S_T0}, s{S_I}, 1'); a(f's_add_u32 s{S_T0}, s{S_T0}, s{S_RH}'); a(f's_mul_i32 s{S_T0}, s{S_T0}, 56')
    a(f's_lshl_b32 s{S_T1}, s{S_JG}, 2'); a(f's_add_u32 s{S_T0}, s{S_T0}, s{S_T1}'); a(f's_add_u32 s{S_T0}, s{S_T0}, s{S_CP}')
    a(f's_lshl_b32 s{S_T0}, s{S_T0}, 12'); a(f's_add_u32 s{S_T0}, s{S_T0}, {WS_H}')
    a(f'v_lshlrev_b32 v{T+6}, 4, v0')
    a('s_waitcnt lgkmcnt(0)')
    for k in range(8): a(f'v_add_f32 v{X+8+k}, v{X+8+k}, v{X+16+k}')
    W = V_WF
    for t in range(4):
        acc = V_ACC + t*8
        for k in range(8): a(f'v_fma_f32 v{W+k}, v{X+2*t+1}, v{X+8+k}, v{B+k}')
        for k in range(8): a(f'v_fma_f32 v{acc+k}, v{acc+k}, v{X+2*t}, v{W+k}')
        for k in range(8): a(f'v_mul_f32 v{W+k}, v{acc+k}, v{acc+k}')
        for k in range(8): a(f'v_fma_f32 v{W+k}, v{W+k}, v{T+7}, s{S_C1}')
        for k in range(8): a(f'v_mul_f32 v{W+k}, v{W+k}, v{acc+k}')
        for k in range(8): a(f'v_exp_f32 v{W+k}, v{W+k}')
        for k in range(8): a(f'v_add_f32 v{W+k}, 1.0, v{W+k}')
        for k in range(8): a(f'v_rcp_f32 v{W+k}, v{W+k}')
        for k in range(8): a(f'v_mul_f32 v{acc+k}, v{acc+k}, v{W+k}')
        o = W + 8 + (t & 1) * 4
        for k in range(4): a(f'v_cvt_pk_bf16_f32 v{o+k}, v{acc+2*k}, v{acc+2*k+1}')
        a(f's_xor_b32 s{S_T1}, s{S_CP}, {t}'); a(f's_lshl_b32 s{S_T1}, s{S_T1}, 10'); a(f's_add_u32 s{S_T1}, s{S_T1}, s{S_T0}')
        a(f'buffer_store_dwordx4 v[{o}:{o+3}], v{T+6}, s[{R_WS}:{R_WS+3}], s{S_T1} offen{ST}'); vm.issue('h')

def p1_epi_F(a, vm):
    T = V_T
    X = V_XF
    for t in range(4):
        a(f'ds_read_b32 v{X+t}, v{T+8+t} offset:8')
    a('s_waitcnt lgkmcnt(0)')
    O = X + 8
    for t in range(4):
        acc = V_ACC + t*8
        for k in range(8): a(f'v_mul_f32 v{acc+k}, v{acc+k}, v{X+t}')
        for q in range(4): a(f'v_cvt_pk_bf16_f32 v{O+q*4+t}, v{acc+2*q}, v{acc+2*q+1}')
    for bit in range(2):
        l = a.label('L_nsw')
        a(f's_bitcmp1_b32 s{S_CP}, {bit}'); a(f's_cbranch_scc0 {l}')
        for q in range(4):
            for t in range(4):
                if not (t >> bit) & 1:
                    a(f'v_swap_b32 v{O+q*4+t}, v{O+q*4+(t ^ (1 << bit))}')
        a(f'{l}:')
    a(f's_lshl_b32 s{S_T0}, s{S_HX}, 2'); a(f's_add_u32 s{S_T0}, s{S_T0}, s{S_CP}'); a(f's_add_u32 s{S_T0}, s{S_T0}, 8')
    a(f's_lshl_b32 s{S_T0}, s{S_T0}, 17'); a(f's_add_u32 s{S_T0}, s{S_T0}, s{S_T3}')
    if WS_Y1: a(f's_add_u32 s{S_T0}, s{S_T0}, {WS_Y1}')
    for q in range(4):
        a(f's_add_u32 s{S_T1}, s{S_T0}, {(q>>1)*65536 + (q&1)*8192}')
        a(f'buffer_store_dwordx4 v[{O+q*4}:{O+q*4+3}], v{T+6}, s[{R_WS}:{R_WS+3}], s{S_T1} offen{ST}'); vm.issue('y1')

def p1(a):
    vm = VM()
    p1_setup(a, vm)
    lf, ld = a.label('L_typeF'), a.label('L_p1done')
    a(f's_cmp_eq_u32 s{S_Q}, 7'); a(f's_cbranch_scc1 {lf}')
    for typeF in (False, True):
        v = vm.copy()
        if typeF: a(f'{lf}:')
        stamp(a, 'setup')
        for x in p1_dma(a, v, 0, typeF): a(x)
        p1_gen_extra(a, 0)
        for x in p1_dma(a, v, 1, typeF): a(x)
        p1_gen_extra(a, 1)
        for x in p1_dma(a, v, 2, typeF): a(x)
        p1_addr_setup(a)
        for x in p1_dma(a, v, 3, typeF): a(x)
        p1_wdma(a, v)
        if not typeF: p1_b1(a, v)
        srd(a, R_WS, P_WS, WS_SIZE)
        stamp(a, 'issued')
        if typeF:
            p1_genF_init(a)
            for c in range(4):
                for x in p1_genF(c): a(x)
        p1_loop(a, v, typeF)
        stamp(a, 'loopend')
        p1_stats(a, v, typeF)
        stamp(a, 'stats')
        (p1_epi_F if typeF else p1_epi_G)(a, v)
        stamp(a, 'epi')
        if not typeF: a(f's_branch {ld}')
    a(f'{ld}:')

def mfma(a, d, A, B, first=False):
    a(f'v_mfma_f32_16x16x32_bf16 {vr(d,4)}, {vr(A,4)}, {vr(B,4)}, {"0" if first else vr(d,4)}')

class P2R:
    Z = 8; FA = 40; FB = 72; TW1 = 104; TW2 = 120; W = 136; ACC = 144; PK = 160; T = 168; AD = 4
L_P2X = 0

def trig_pairs(a, T, kf, base, n, emit):
    for i0 in range(0, n, 4):
        for q in range(4):
            kreg, breg, add = base(i0 + q)
            a(f'v_fmamk_f32 v{T+q}, v{kreg}, {fh(float(add))}, v{breg}')
        for q in range(4):
            a(f'v_cos_f32 v{T+4+q}, v{T+q}')
            a(f'v_sin_f32 v{T+q}, v{T+q}')
        for q in range(4):
            emit(i0 + q, T+4+q, T+q)

def p2_consts(a, scol):
    R = P2R; T = R.T
    K = T + 8
    a(f'v_lshl_add_u32 v{K}, v3, 4, v1')
    a(f'v_cvt_f32_u32 v{K}, v{K}')
    a(f'v_lshlrev_b32 v{K+1}, 2, v2')
    a(f'v_cvt_f32_u32 v{K+1}, v{K+1}')
    a(f'v_cvt_f32_u32 v{K+2}, v1')
    a(f'v_mul_f32 v{K+3}, {fh(1/64)}, v{K}')
    a(f'v_mul_f32 v{K+4}, v{K+3}, v{K+1}')
    def emFA(i, c, s):
        a(f'v_cvt_pk_bf16_f32 v{R.FA+i}, v{c}, v{s}')
        a(f'v_cvt_pk_bf16_f32 v{R.FA+16+i}, -v{s}, v{c}')
    trig_pairs(a, T, None, lambda i: (K+3, K+4, 16*(i>>2) + (i&3)), 16, emFA)
    a(f'v_mul_f32 v{K+3}, {fh(1/2048)}, v{K}')
    a(f'v_mul_f32 v{K+4}, v{K+3}, v{K+1}')
    for i in range(8):
        a(f'v_fmamk_f32 v{R.TW1+8+i}, v{K+3}, {fh(float(16*(i>>2) + (i&3)))}, v{K+4}')
    for i in range(8):
        a(f'v_cos_f32 v{R.TW1+i}, v{R.TW1+8+i}')
        a(f'v_sin_f32 v{R.TW1+8+i}, v{R.TW1+8+i}')
    for X in range(2):
        a(f'v_add_f32 v{K+3}, {fh(16.0*X)}, v{K+2}')
        a(f'v_mul_f32 v{K+3}, {fh(1/32)}, v{K+3}')
        a(f'v_mul_f32 v{K+4}, v{K+3}, v{K+1}')
        def emFB(i, c, s, X=X):
            Y, j = i >> 2, i & 3
            b = R.FB + (X*2+Y)*8
            a(f'v_cvt_pk_bf16_f32 v{b+j}, v{c}, v{s}')
            a(f'v_cvt_pk_bf16_f32 v{b+4+j}, -v{s}, v{c}')
        trig_pairs(a, T, None, lambda i: (K+3, K+4, 16*(i>>2) + (i&3)), 8, emFB)
    a(f'v_lshlrev_b32 v{K+5}, 4, v3')
    a(f'v_cvt_f32_u32 v{K+5}, v{K+5}')
    a(f'v_add_f32 v{K+5}, v{K+5}, v{K+1}')
    a(f's_cmp_eq_u32 s{scol}, 255')
    a(f's_mov_b32 s{S_T0}, {fh(2.0**-19)}')
    a(f's_cselect_b32 s{S_T0}, {fh(2.0**-20)}, s{S_T0}')
    for bh in range(2):
        a(f'v_add_f32 v{K+3}, {fh(16.0*bh)}, v{K+2}')
        a(f'v_mul_f32 v{K+3}, {fh(1/2048)}, v{K+3}')
        a(f'v_mul_f32 v{K+4}, v{K+3}, v{K+5}')
        for j in range(4):
            a(f'v_fmamk_f32 v{R.TW2+8+bh*4+j}, v{K+3}, {fh(float(j))}, v{K+4}')
    for i in range(8):
        a(f'v_cos_f32 v{R.TW2+i}, v{R.TW2+8+i}')
        a(f'v_sin_f32 v{R.TW2+8+i}, v{R.TW2+8+i}')
    for i in range(16):
        a(f'v_mul_f32 v{R.TW2+i}, s{S_T0}, v{R.TW2+i}')

def p2_loads(a, vm, scol):
    R = P2R
    a(f'v_lshlrev_b32 v{R.AD}, 9, v2')
    a(f'v_lshl_add_u32 v{R.AD}, v1, 4, v{R.AD}')
    a(f'v_lshlrev_b32 v{R.AD+1}, 10, v3')
    a(f'v_lshl_add_u32 v{R.AD+1}, v0, 4, v{R.AD+1}')
    a(f's_lshl_b32 s{S_T1}, s{scol}, 13')
    if WS_Y1: a(f's_add_u32 s{S_T1}, s{S_T1}, {WS_Y1}')
    a(f's_add_u32 s{S_T2}, s{S_T1}, 4096')
    for k in range(4):
        for bh in range(2):
            d = R.Z + (bh*4+k)*4
            a(f'buffer_load_dwordx4 {vr(d,4)}, v{R.AD}, s[{R_WS}:{R_WS+3}], s{S_T1 if k < 2 else S_T2} offen offset:{(k&1)*2048 + bh*256}{LD}')
            vm.issue(f'z{k}')
    a(f's_add_u32 s{S_T1}, s{S_T1}, {WS_WT - WS_Y1}'); a(f's_add_u32 s{S_T2}, s{S_T2}, {WS_WT - WS_Y1}')
    a(f'buffer_load_dwordx4 {vr(R.W,4)}, v{R.AD+1}, s[{R_WS}:{R_WS+3}], s{S_T1} offen{LD}'); vm.issue('w')
    a(f'buffer_load_dwordx4 {vr(R.W+4,4)}, v{R.AD+1}, s[{R_WS}:{R_WS+3}], s{S_T2} offen{LD}'); vm.issue('w')

def p2_twiddle(a, tw):
    R = P2R; T = R.T
    for h in range(2):
        re, im = R.ACC + h*8, R.ACC + h*8 + 4
        for j in range(4):
            a(f'v_mul_f32 v{T+j}, v{re+j}, v{tw+h*4+j}')
            a(f'v_mul_f32 v{T+4+j}, v{im+j}, v{tw+h*4+j}')
        for j in range(4):
            a(f'v_fmac_f32 v{T+j}, v{im+j}, v{tw+8+h*4+j}')
            a(f'v_fma_f32 v{T+4+j}, -v{re+j}, v{tw+8+h*4+j}, v{T+4+j}')
        for j in range(4):
            a(f'v_cvt_pk_bf16_f32 v{R.PK+h*4+j}, v{T+j}, v{T+4+j}')

def p2_compute(a, vm, scol, sync):
    R = P2R; T = R.T
    for k in range(4):
        vm.wait(a, f'z{k}')
        for bh in range(2):
            for comp in range(2):
                mfma(a, R.ACC + bh*8 + comp*4, R.Z + (bh*4+k)*4, R.FA + comp*16 + k*4, k == 0)
    stamp(a, 'p2A')
    p2_twiddle(a, R.TW1)
    for bh in range(2):
        for th in range(2):
            for comp in range(2):
                mfma(a, R.ACC + th*8 + comp*4, R.FB + (th*2+bh)*8 + comp*4, R.PK + bh*4, bh == 0)
    vm.wait(a, 'w')
    WF = R.Z
    for i in range(8):
        a(f'v_lshlrev_b32 v{WF+i}, 16, v{R.W+i}')
        a(f'v_and_b32 v{WF+8+i}, 0xffff0000, v{R.W+i}')
    for h in range(2):
        re, im = R.ACC + h*8, R.ACC + h*8 + 4
        for j in range(4):
            a(f'v_mul_f32 v{T+j}, v{re+j}, v{WF+h*4+j}')
            a(f'v_mul_f32 v{T+4+j}, v{im+j}, v{WF+h*4+j}')
        for j in range(4):
            a(f'v_fma_f32 v{T+j}, -v{im+j}, v{WF+8+h*4+j}, v{T+j}')
            a(f'v_fmac_f32 v{T+4+j}, v{re+j}, v{WF+8+h*4+j}')
        for j in range(4):
            a(f'v_cvt_pk_bf16_f32 v{R.PK+h*4+j}, v{T+j}, -v{T+4+j}')
    for th in range(2):
        for bh in range(2):
            for comp in range(2):
                mfma(a, R.ACC + bh*8 + comp*4, R.PK + th*4, R.FB + (bh*2+th)*8 + comp*4, th == 0)
    p2_twiddle(a, R.TW2)
    for bh in range(2):
        a(f'ds_write_b128 v{R.AD+1}, {vr(R.PK+bh*4,4)} offset:{L_P2X + bh*4096}')
    a(f'v_lshlrev_b32 v{R.AD+2}, 4, v0')
    a('s_waitcnt lgkmcnt(0)')
    sync(a)
    stamp(a, 'p2X')
    for k in range(4):
        for bh in range(2):
            d = R.Z + (bh*4+k)*4
            a(f'ds_read_b128 {vr(d,4)}, v{R.AD+2} offset:{L_P2X + bh*4096 + k*1024}')
    for k in range(4):
        a(f's_waitcnt lgkmcnt({6-2*k})')
        for bh in range(2):
            for comp in range(2):
                mfma(a, R.ACC + bh*8 + comp*4, R.FA + comp*16 + k*4, R.Z + (bh*4+k)*4, k == 0)
    a(f'v_lshl_add_u32 v{R.AD+2}, v3, 11, v{R.AD}')
    a(f's_lshl_b32 s{S_T1}, s{scol}, 13'); a(f's_add_u32 s{S_T1}, s{S_T1}, {WS_Y2}')
    for bh in range(2):
        for j in range(4):
            a(f'v_cvt_pk_bf16_f32 v{R.PK+bh*4+j}, v{R.ACC+bh*8+j}, -v{R.ACC+bh*8+4+j}')
        a(f'buffer_store_dwordx4 {vr(R.PK+bh*4,4)}, v{R.AD+2}, s[{R_WS}:{R_WS+3}], s{S_T1} offen offset:{bh*256}{ST}'); vm.issue('y2')

def p2_split(a):
    vm = VM()
    a('s_waitcnt lgkmcnt(0)')
    srd(a, R_WS, P_WS, WS_SIZE)
    p2_loads(a, vm, 2)
    p2_consts(a, 2)
    stamp(a, 'p2c')
    p2_compute(a, vm, 2, lambda a: a('s_barrier'))
    stamp(a, 'p2e')

class P3R:
    AD = 4
    RAW = 12
    ACC = 140
    HF = 204
    T = 252
S_RT, S_CT, S_HOFF, S_SEL0, S_SEL1 = 76, 77, 78, 79, 80

def p3_ids(a):
    a(f's_and_b32 s{S_RT}, s2, 7'); a(f's_bfe_u32 s{S_T0}, s2, 0x20003'); a(f's_lshl2_add_u32 s{S_RT}, s{S_RT}, s{S_T0}')
    a(f's_lshr_b32 s{S_CT}, s2, 5')
    a(f's_mov_b32 s{S_SEL0}, 0x05040100'); a(f's_mov_b32 s{S_SEL1}, 0x07060302')

def p3_w2_addr(a):
    R = P3R
    a(f'v_mul_u32_u24 v{R.AD}, 224, v3')
    a(f'v_lshrrev_b32 v{R.AD+1}, 3, v1')
    a(f'v_lshl_add_u32 v{R.AD}, v{R.AD+1}, 4, v{R.AD}')
    a(f'v_lshl_add_u32 v{R.AD}, v2, 2, v{R.AD}')
    a(f'v_lshlrev_b32 v{R.AD}, 10, v{R.AD}')
    a(f'v_and_b32 v{R.AD+1}, 7, v1')
    a(f'v_lshl_add_u32 v{R.AD}, v{R.AD+1}, 4, v{R.AD}')
    a(f'v_lshl_add_u32 v{R.AD}, s{S_CT}, 7, v{R.AD}')
def p3_w2_loads(vm, k):
    R = P3R
    out = [f's_mov_b32 s{S_T0}, {k*32768}']
    for rho in range(4):
        d = R.RAW + k*16 + rho*4
        out.append(f'buffer_load_dwordx4 {vr(d,4)}, v{R.AD}, s[{R_W2}:{R_W2+3}], s{S_T0} offen offset:{rho*1024}')
        vm.issue(f'w2_{k}')
    return out
def p3_w2_xpose(src, dst, T):
    out = []
    for rp in range(2):
        ra, rb = src + rp*8, src + rp*8 + 4
        for e in range(4):
            sel = S_SEL1 if e & 1 else S_SEL0
            out.append(f'v_perm_b32 v{dst+e*4+rp}, v{rb+(e>>1)}, v{ra+(e>>1)}, s{sel}')
            out.append(f'v_perm_b32 v{dst+e*4+2+rp}, v{rb+2+(e>>1)}, v{ra+2+(e>>1)}, s{sel}')
            out.append(f'v_perm_b32 v{T+e}, v{rb+(e>>1)}, v{ra+(e>>1)}, s{sel}')
        for e in range(4):
            out.append(f'v_mov_b32_dpp v{dst+e*4+rp}, v{dst+e*4+2+rp} row_ror:8 row_mask:0xf bank_mask:0xc')
        for e in range(4):
            out.append(f'v_mov_b32_dpp v{dst+e*4+2+rp}, v{T+e} row_ror:8 row_mask:0xf bank_mask:0x3')
    return out
def p3_h_addr(a):
    R = P3R
    a(f'v_mul_u32_u24 v{R.AD+2}, {7*4096}, v3')
    a(f'v_lshl_add_u32 v{R.AD+2}, v0, 4, v{R.AD+2}')
    a(f's_mul_i32 s{S_HOFF}, s{S_RT}, {56*4096}'); a(f's_add_u32 s{S_HOFF}, s{S_HOFF}, {WS_H}')
def p3_h_loads(vm, k, dst):
    R = P3R
    out = [f's_add_u32 s{S_T1}, s{S_HOFF}, {k*4096}']
    for t in range(4):
        out.append(f'buffer_load_dwordx4 {vr(dst+t*4,4)}, v{R.AD+2}, s[{R_WS}:{R_WS+3}], s{S_T1} offen offset:{t*1024}{LD}')
        vm.issue(f'h{k}')
    return out
def p3_y2_loads(a, vm, dst):
    R = P3R
    a(f'v_lshl_add_u32 v{R.AD+3}, v3, 2, v2')
    a(f'v_lshlrev_b32 v{R.AD+3}, 15, v{R.AD+3}')
    a(f'v_lshl_add_u32 v{R.AD+3}, v1, 4, v{R.AD+3}')
    a(f's_lshl_b32 s{S_T2}, s{S_RT}, 8')
    for k3 in range(2):
        for i in range(4):
            a(f's_add_u32 s{S_T1}, s{S_T2}, {WS_Y2 + (128*k3 + i)*8192}')
            a(f'buffer_load_dwordx4 {vr(dst+k3*16+i*4,4)}, v{R.AD+3}, s[{R_WS}:{R_WS+3}], s{S_T1} offen{LD}')
            vm.issue(f'y2_{k3}')
def xpose4(a, b):
    for r in range(4):
        for c in range(r+1, 4):
            a(f'v_swap_b32 v{b+r*4+c}, v{b+c*4+r}')
def p3_genG(a, G, T):
    K = T + 8
    a(f'v_and_b32 v{K}, 7, v1')
    a(f'v_lshlrev_b32 v{K}, 3, v{K}')
    a(f'v_lshrrev_b32 v{K+1}, 3, v1')
    a(f'v_lshl_add_u32 v{K}, v{K+1}, 2, v{K}')
    a(f'v_lshl_add_u32 v{K}, s{S_CT}, 6, v{K}')
    a(f'v_cvt_f32_u32 v{K}, v{K}')
    a(f'v_mul_f32 v{K}, {fh(1/512)}, v{K}')
    a(f'v_lshl_add_u32 v{K+1}, v3, 2, v2')
    a(f'v_lshlrev_b32 v{K+1}, 2, v{K+1}')
    a(f'v_add_u32 v{K+1}, 1, v{K+1}')
    a(f'v_cvt_f32_u32 v{K+1}, v{K+1}')
    for e in range(4):
        a(f'v_add_f32 v{K+2}, {fh(e/512)}, v{K}')
        a(f'v_mul_f32 v{K+3}, v{K+2}, v{K+1}')
        def em(i, c, s, e=e):
            a(f'v_cvt_pk_bf16_f32 v{G+e*4+i}, v{c}, -v{s}')
            lo, hi = [(f'v{c}', f'-v{s}'), (f'-v{s}', f'-v{c}'), (f'-v{c}', f'v{s}'), (f'v{s}', f'v{c}')][e]
            a(f'v_cvt_pk_bf16_f32 v{G+16+e*4+i}, {lo}, {hi}')
        trig_pairs(a, T, None, lambda i: (K+2, K+3, i), 4, em)
def p3_step(A, B, first):
    R = P3R
    return [f'v_mfma_f32_16x16x32_bf16 {vr(R.ACC+(t*4+e)*4,4)}, {vr(A+t*4,4)}, {vr(B+e*4,4)}, {"0" if first else vr(R.ACC+(t*4+e)*4,4)}'
            for t in range(4) for e in range(4)]

def p3_final_loads(a, vm, XR):
    R = P3R
    A = R.AD + 4
    a(f'v_lshrrev_b32 v{A}, 1, v3')
    a(f'v_lshlrev_b32 v{A}, 5, v{A}')
    a(f'v_bfe_u32 v{A+1}, v0, 3, 2')
    a(f'v_lshl_add_u32 v{A}, v{A+1}, 2, v{A}')
    a(f'v_and_b32 v{A+1}, 1, v3')
    a(f'v_lshl_add_u32 v{A}, v{A+1}, 1, v{A}')
    a(f'v_lshrrev_b32 v{A+1}, 5, v0')
    a(f'v_add_u32 v{A}, v{A}, v{A+1}')
    a(f's_lshr_b32 s{S_T0}, s{S_RT}, 1'); a(f's_lshl_b32 s{S_T0}, s{S_T0}, 7')
    a(f's_and_b32 s{S_T1}, s{S_RT}, 1'); a(f's_lshl4_add_u32 s{S_T0}, s{S_T1}, s{S_T0}')
    a(f'v_add_u32 v{A}, s{S_T0}, v{A}')
    a(f'v_lshlrev_b32 v{A}, 10, v{A}')
    a(f'v_and_b32 v{A+1}, 7, v0')
    a(f'v_lshlrev_b32 v{A+1}, 4, v{A+1}')
    a(f'v_lshl_add_u32 v{A+1}, s{S_CT}, 7, v{A+1}')
    a(f'v_add_u32 v{A}, v{A}, v{A+1}')
    a(f'buffer_load_dwordx4 {vr(XR,4)}, v{A}, s[{R_X}:{R_X+3}], 0 offen'); vm.issue('xr')
    a(f'buffer_load_dwordx4 {vr(XR+4,4)}, v{A+1}, s[{R_B2}:{R_B2+3}], 0 offen'); vm.issue('xr')

def p3_reduce(a, vm, XR, S):
    R = P3R
    A = R.AD + 6
    for t in range(4): xpose4(a, R.ACC + t*16)
    a(f'v_lshrrev_b32 v{A}, 3, v1')
    a(f'v_lshlrev_b32 v{A}, 5, v{A}')
    a(f'v_lshl_add_u32 v{A}, v2, 3, v{A}')
    a(f'v_and_b32 v{A+1}, 7, v1')
    a(f'v_add_u32 v{A}, v{A}, v{A+1}')
    a(f'v_lshlrev_b32 v{A}, 4, v{A}')
    a(f'v_lshl_add_u32 v{A}, v3, 14, v{A}')
    for q in range(16):
        a(f'ds_write_b128 v{A}, {vr(R.ACC+q*4,4)} offset:{q*1024}')
    a(f'v_lshrrev_b32 v{A+1}, 5, v0')
    a(f'v_lshl_add_u32 v{A+1}, v3, 1, v{A+1}')
    a(f'v_lshlrev_b32 v{A+1}, 10, v{A+1}')
    a(f'v_and_b32 v{A}, 31, v0')
    a(f'v_lshl_add_u32 v{A}, v{A}, 4, v{A+1}')
    a(f'v_add_u32 v{A+1}, 0x10000, v{A}')
    a('s_waitcnt lgkmcnt(0)')
    a('s_barrier')
    stamp(a, 'p3bar')
    for p in range(8):
        for h in range(2):
            a(f'ds_read_b128 {vr(S+p*8+h*4,4)}, v{A+(p>>2)} offset:{(p&3)*16384 + h*512}')
    vm.wait(a, 'xr')
    O = R.ACC
    for k in range(4):
        a(f'v_lshlrev_b32 v{O+2*k}, 16, v{XR+k}'); a(f'v_and_b32 v{O+2*k+1}, 0xffff0000, v{XR+k}')
        a(f'v_lshlrev_b32 v{O+8+2*k}, 16, v{XR+4+k}'); a(f'v_and_b32 v{O+8+2*k+1}, 0xffff0000, v{XR+4+k}')
    for k in range(8): a(f'v_add_f32 v{O+k}, v{O+k}, v{O+8+k}')
    for p in range(8):
        a(f's_waitcnt lgkmcnt({14-2*p})')
        for k in range(8): a(f'v_add_f32 v{O+k}, v{O+k}, v{S+p*8+k}')
    for k in range(4): a(f'v_cvt_pk_bf16_f32 v{O+16+k}, v{O+2*k}, v{O+2*k+1}')
    a(f'buffer_store_dwordx4 {vr(O+16,4)}, v{R.AD+4}, s[{R_OUT}:{R_OUT+3}], 0 offen'); vm.issue('out')

def p3_split(a):
    R = P3R
    vm = VM()
    p3_ids(a); p3_w2_addr(a); p3_h_addr(a)
    a('s_waitcnt lgkmcnt(0)')
    srd(a, R_WS, P_WS, WS_SIZE); srd(a, R_W2, P_W2, 1835008)
    for k in range(3):
        for x in p3_w2_loads(vm, k) + p3_h_loads(vm, k, R.HF + k*16): a(x)
    for k in range(3, 7):
        for x in p3_w2_loads(vm, k): a(x)
    srd(a, R_X, P_X, 2097152); srd(a, R_B2, P_B2, 1024); srd(a, R_OUT, P_OUT, 2097152)
    stamp(a, 'p3i')
    blocks = [R.RAW + k*16 for k in range(7)]
    spare = R.RAW + 112
    for k in range(7):
        if f'w2_{k}' in vm.q: vm.wait(a, f'w2_{k}')
        for x in p3_w2_xpose(blocks[k], spare, R.T): a(x)
        blocks[k], spare = spare, blocks[k]
        if f'h{k}' in vm.q: vm.wait(a, f'h{k}')
        for x in p3_step(R.HF + (k % 3)*16, blocks[k], k == 0): a(x)
        if k + 3 < 7:
            for x in p3_h_loads(vm, k + 3, R.HF + (k % 3)*16): a(x)
    stamp(a, 'p3h')
    Y, G, XR = R.RAW, R.RAW + 32, R.RAW + 64
    a('s_nop 7')
    p3_y2_loads(a, vm, Y)
    p3_final_loads(a, vm, XR)
    p3_genG(a, G, R.RAW + 80)
    for k3 in range(2):
        vm.wait(a, f'y2_{k3}')
        xpose4(a, Y + k3*16)
        for x in p3_step(Y + k3*16, G + k3*16, False): a(x)
    stamp(a, 'p3y')
    p3_reduce(a, vm, XR, R.RAW)
    stamp(a, 'p3e')

def finish(a):
    lines, n = hazard.fix(a.lines)
    return '\n'.join(lines) + '\n'

def build_split(phases):
    hdr = ''
    body = '.amdgcn_target "amdgcn-amd-amdhsa--gfx950"\n'
    for name, fn, threads, lds, slot in phases:
        hdr += f'; @launch kernel={name} grid=(256,1,1) block=({threads},1,1) lds={lds}\n'
        a = Asm(); a.nlabel = slot * 1000
        end = f'L_end_{name}'
        prologue(a, end)
        fn(a)
        if TIMING:
            a('s_waitcnt vmcnt(0)')
            stamp(a, 'end')
            dump_stamps(a, len(STAMPS), slot)
        a(f'{end}:'); a('s_endpgm')
        body += kernel_wrap(name, finish(a))
    return hdr + body

if __name__ == '__main__':
    TIMING = 'timing' in sys.argv
    EXP = set(sys.argv[1:])
    STATM = int(([x[6:] for x in sys.argv if x.startswith('statm=')] + ['2'])[0])
    STAMPS = ([x[3:] for x in sys.argv if x.startswith('st=')] + ['start,bar0,loopend,stats,epi,end'])[0].split(',')
    s = build_split([('p1_kernel', p1, 512, LDS_BYTES, 0), ('p2_kernel', p2_split, 256, 8192, 1), ('p3_kernel', p3_split, 512, 131072, 2)])
    open([x[2:] for x in sys.argv if x.startswith('o=')][0] if any(x.startswith('o=') for x in sys.argv) else 'k.s', 'w').write(s)
```
